```python
import torch

def _softmax(x, axis=-1):
    return torch.softmax(x, dim=axis)
def _gelu(x):
    return torch.nn.functional.gelu(x, approximate="tanh")
def _silu(x):
    return torch.nn.functional.silu(x)
def _sigmoid(x):
    return torch.sigmoid(x)
def _layernorm(x, axis=-1, eps=1e-5):
    m = x.mean(dim=axis, keepdim=True)
    v = x.var(dim=axis, keepdim=True, unbiased=False)
    return (x - m) / torch.sqrt(v + eps)
def _scatter_add(tgt, idx, src, axis=0):
    return tgt.clone().index_add_(axis, idx, src)
def _segment_sum(src, seg, n):
    out = torch.zeros((n,) + src.shape[1:], dtype=src.dtype)
    return out.index_add_(0, seg, src)
def _pad(x, pw):
    flat = tuple(v for pair in reversed(pw) for v in pair)
    return torch.nn.functional.pad(x, flat)

kernel_name = 'sequential_preLN__sliding_block_cached__glu_gated_swiglu__decode'

def setup_inputs():

    _w = (lambda a: (lambda t: t.to(torch.bfloat16) if t.is_floating_point() else t)(torch.as_tensor(a)))
    def _A_setup():
        B, Sq, D = 4, 1, 640
        Hq, Hkv, Sk, Dh = 32, 32, 8192, 128
        assert Hq % Hkv == 0, (Hq, Hkv)
        return {
            "x": _w((lambda *s: torch.randn(*s, dtype=torch.bfloat16) * 0.05)(B, Sq, D)),
            "k_cache": _w((lambda *s: torch.randn(*s, dtype=torch.bfloat16) * 1.6)(B, Hkv, Sk, Dh)),
            "v_cache": _w((lambda *s: torch.randn(*s, dtype=torch.bfloat16) * 0.8)(B, Hkv, Sk, Dh)),
            "wq": _w((lambda *s: torch.randn(*s, dtype=torch.bfloat16) * 1.6)(D, Hq * Dh) * (D ** -0.5)),
            "wo": _w((lambda *s: torch.randn(*s, dtype=torch.bfloat16) * 0.8)(Hq * Dh, D) * ((Hq * Dh) ** -0.5)),
        }
    _A_in = _A_setup()

    def _B_setup():
        B, S, D, F = 4, 1, 640, 1728
        return {
            "x": _w((lambda *s: torch.randn(*s, dtype=torch.bfloat16) * 0.05)(B, S, D)),
            "w1": _w((lambda *s: torch.randn(*s, dtype=torch.bfloat16) * 0.4)(D, F) * (2.0 / D) ** 0.5),
            "w3": _w((lambda *s: torch.randn(*s, dtype=torch.bfloat16) * 0.4)(D, F) * (2.0 / D) ** 0.5),
            "w2": _w((lambda *s: torch.randn(*s, dtype=torch.bfloat16) * 0.4)(F, D) * (2.0 / F) ** 0.5),
        }
    _B_in = _B_setup()

    return {
        "A_x": _A_in["x"],
        "A_k_cache": _A_in["k_cache"],
        "A_v_cache": _A_in["v_cache"],
        "A_wq": _A_in["wq"],
        "A_wo": _A_in["wo"],
        "B_x": _B_in["x"],
        "B_w1": _B_in["w1"],
        "B_w3": _B_in["w3"],
        "B_w2": _B_in["w2"],
    }

def reference(A_x, A_k_cache, A_v_cache, A_wq, A_wo, B_x, B_w1, B_w3, B_w2):
    def _A_ref(x, k_cache, v_cache, wq, wo):
        B, Sq, D = x.shape
        Hq, Dh = 32, 128
        Hkv, Sk = k_cache.shape[1], k_cache.shape[2]
        W = min(4096, max(256, Sk // 4))
        rep = Hq // Hkv
        q = (lambda x, *d: x.permute(*d))((x @ wq).reshape(B, Sq, Hq, Dh), 0, 2, 1, 3)
        k = (lambda x, n, axis: torch.repeat_interleave(x, n, dim=axis))(k_cache[:, :, Sk - W:, :], rep, axis=1)
        v = (lambda x, n, axis: torch.repeat_interleave(x, n, dim=axis))(v_cache[:, :, Sk - W:, :], rep, axis=1)
        scores = torch.einsum("bhqd,bhkd->bhqk", q, k) * (Dh ** -0.5)
        p = _softmax(scores, axis=-1)
        o = torch.einsum("bhqk,bhkd->bhqd", p, v)
        return (lambda x, *d: x.permute(*d))(o, 0, 2, 1, 3).reshape(B, Sq, Hq * Dh) @ wo

    def _B_ref(x, w1, w3, w2):
        gate = torch.einsum("bsd,df->bsf", x, w1)
        up = torch.einsum("bsd,df->bsf", x, w3)
        h = _silu(gate) * up
        out = torch.einsum("bsf,fd->bsd", h, w2)
        return out

    x = A_x
    h = x + _A_ref(_layernorm(x, axis=-1), A_k_cache, A_v_cache, A_wq, A_wo)
    h2 = h + _B_ref(_layernorm(h, axis=-1), B_w1, B_w3, B_w2)
    return h2
```

```python
import sys, os

NAME = "sequential_preLN__sliding_block_cached__glu_gated_swiglu__decode"

class Cfg:
    D = 16
    diag = False
    ffn_pol = "nt"
    code_pf = True
    kcatch = 4
    name = NAME + "_kernel"

ML_OFF = 0
H_OFF = 8192
Y_OFF = 16384
F_OFF = Y_OFF + 256 * 2560
WS_END = F_OFF + 108 * 10240
DIAG_OFF = 0x4000000
L_Q = 0
L_QB = 4096
L_O = 5120
L_Y = 9216
L_G = 19456
L_W = 24576
LDS_BYTES = L_W + 4 * 15360

LOG2E = 0x3FB8AA3B
SCALE = 0x3DB504F3
INV640 = 0x3ACCCCCD
EPS = 0x3727C5AC
SPIN_MAX = 1 << 20

class Gen:
    def __init__(self, cfg):
        self.c = cfg
        self.o = []
        self.q = []
        self.done = 0
        self.lab = 0
        self.nstamp = 0
    def a(self, s):
        self.o.append(s)
    def nop(self, n):
        while n > 0:
            k = min(n, 16)
            self.a(f"s_nop {k-1}")
            n -= k
    def label(self, base):
        self.lab += 1
        return f"L_{base}_{self.lab}"
    def issue(self, tag, text):
        self.a(text)
        self.q.append(tag)
    def wait(self, tag):
        idx = self.q.index(tag)
        if idx < self.done:
            return False
        n = len(self.q) - 1 - idx
        assert n <= 63
        self.a(f"s_waitcnt vmcnt({n})")
        self.done = idx + 1
        return True
    def drain(self):
        self.a("s_waitcnt vmcnt(0)")
        self.done = len(self.q)
    def stamp(self, k):
        if self.c.diag:
            self.a(f"s_memrealtime s[{84+2*(k%2)}:{85+2*(k%2)}]")
            self.a("s_waitcnt lgkmcnt(0)")
            self.a(f"v_writelane_b32 v63, s{84+2*(k%2)}, {k}")
    def wred(self, op, v, t):
        a = self.a
        for ctl in ("quad_perm:[1,0,3,2]", "quad_perm:[2,3,0,1]", "row_half_mirror", "row_mirror"):
            a(f"{op}_dpp v{v}, v{v}, v{v} {ctl} row_mask:0xf bank_mask:0xf")
            if ctl != "row_mirror":
                a("s_nop 1")
        a(f"v_mov_b32 v{t}, v{v}")
        a("s_nop 1")
        a(f"v_permlane16_swap_b32 v{v}, v{t}")
        a("s_nop 0")
        a(f"{op} v{v}, v{v}, v{t}")
        a(f"v_mov_b32 v{t}, v{v}")
        a("s_nop 1")
        a(f"v_permlane32_swap_b32 v{v}, v{t}")
        a("s_nop 0")
        a(f"{op} v{v}, v{v}, v{t}")
    def rbf(self, d, s):
        self.a(f"v_cvt_pk_bf16_f32 v{d}, v{s}, v{s}")
        self.a(f"v_and_b32 v{d}, 0xffff0000, v{d}")

    def build(self):
        c = self.c; a = self.a; D = c.D
        vLane, vI, vG = 1, 2, 3
        vKoff, vVoff, vQoff, vOoff = 4, 5, 6, 7
        vM = [8, 9, 10, 11]
        vA = [[12, 13, 14, 15], [16, 17, 18, 19]]
        vAcc = 20
        vQf = [24, 28]
        vS = [32, 33, 34, 35]
        vX = [36, 37, 38]
        vT = list(range(40, 62))
        vXres = 62
        RING = 64
        vD = [128, 132, 136, 140]
        vY = [144, 148, 152, 156, 160]
        vP = 164
        vMs, vLs = 224, 225
        vML = 226
        vCnt = 228
        vClr = 232
        vC0, vC1, vC2, vC3 = 236, 237, 238, 239
        vFo1, vFo2 = 240, 241
        vU = list(range(242, 256))
        sW = 3
        sKs, sVs, sQs, sOs = 4, 5, 6, 7
        sH, sB, sSp, sBH = 8, 9, 10, 11
        sFi, sIsF, sRb, sRc = 12, 13, 14, 15
        SK, SV, SQ, SO, SX, S1, S3, S2, SOUT, SDBG, SWS = 40, 44, 48, 52, 56, 60, 64, 68, 72, 76, 80
        sT = [88, 89, 90, 91, 92, 93, 94, 95]
        sMask = 96
        sMt = [98, 100]
        sF = [88, 89, 90, 91]
        srd = lambda r: f"s[{r}:{r+3}]"
        def mksrd(r, p, size):
            a(f"s_mov_b32 s{r}, s{p}\ns_mov_b32 s{r+1}, s{p+1}\ns_mov_b32 s{r+2}, {size}\ns_mov_b32 s{r+3}, 0x00020000")

        a(f"{c.name}:")
        a("s_cmp_ge_u32 s2, 256")
        a("s_cbranch_scc1 L_end")
        a("s_load_dwordx16 s[16:31], s[0:1], 0")
        a("s_load_dwordx8 s[32:39], s[0:1], 64")
        if c.diag:
            a("v_mov_b32 v63, 0")
        a(f"v_lshrrev_b32 v{vT[0]}, 6, v0")
        a(f"v_and_b32 v{vLane}, 63, v0")
        a(f"v_readfirstlane_b32 s{sW}, v{vT[0]}")
        a(f"v_and_b32 v{vI}, 15, v0")
        a(f"v_lshrrev_b32 v{vG}, 4, v{vLane}")
        a(f"s_and_b32 s{sT[0]}, s2, 7")
        a(f"s_lshr_b32 s{sT[1]}, s2, 6")
        a(f"s_lshl_b32 s{sT[1]}, s{sT[1]}, 3")
        a(f"s_add_u32 s{sH}, s{sT[0]}, s{sT[1]}")
        a(f"s_bfe_u32 s{sB}, s2, 0x20004")
        a(f"s_bfe_u32 s{sSp}, s2, 0x10003")
        a(f"s_lshl_b32 s{sBH}, s{sB}, 5")
        a(f"s_add_u32 s{sBH}, s{sBH}, s{sH}")
        a(f"s_lshl_b32 s{sKs}, s{sBH}, 21")
        a(f"s_lshl_b32 s{sT[0]}, s{sSp}, 18")
        a(f"s_add_u32 s{sKs}, s{sKs}, s{sT[0]}")
        a(f"s_lshl_b32 s{sT[0]}, s{sW}, 12")
        a(f"s_add_u32 s{sKs}, s{sKs}, s{sT[0]}")
        a(f"s_add_u32 s{sKs}, s{sKs}, 0x180000")
        a(f"s_mov_b32 s{sVs}, s{sKs}")
        a(f"s_mul_i32 s{sQs}, s{sW}, {160*8192}")
        a(f"s_lshl_b32 s{sT[0]}, s{sH}, 8")
        a(f"s_add_u32 s{sQs}, s{sQs}, s{sT[0]}")
        a(f"s_mul_i32 s{sT[2]}, s{sB}, 1280")
        a(f"s_mul_i32 s{sT[3]}, s{sW}, 320")
        a(f"s_add_u32 s{sT[3]}, s{sT[3]}, s{sT[2]}")
        a(f"v_lshrrev_b32 v{vT[0]}, 2, v{vI}")
        a(f"v_and_b32 v{vT[1]}, 2, v{vI}")
        a(f"v_lshl_add_u32 v{vT[0]}, v{vT[1]}, 1, v{vT[0]}")
        a(f"v_lshlrev_b32 v{vKoff}, 8, v{vT[0]}")
        a(f"v_lshl_add_u32 v{vKoff}, v{vG}, 5, v{vKoff}")
        a(f"v_and_b32 v{vT[1]}, 1, v{vI}")
        a(f"v_lshl_add_u32 v{vKoff}, v{vT[1]}, 4, v{vKoff}")
        a(f"v_lshlrev_b32 v{vVoff}, 4, v{vLane}")
        a(f"v_lshlrev_b32 v{vQoff}, 13, v{vG}")
        a(f"v_lshl_add_u32 v{vQoff}, v{vI}, 4, v{vQoff}")
        a(f"v_lshlrev_b32 v{vT[2]}, 2, v{vLane}")
        a(f"v_lshlrev_b32 v{vT[3]}, 3, v{vI}")
        a(f"v_lshl_add_u32 v{vT[3]}, v{vG}, 1, v{vT[3]}")
        a("s_waitcnt lgkmcnt(0)")
        self.stamp(0)
        mksrd(SX, 16, 5120)
        xa = [vP + k for k in range(5)]
        xo = [vP + 5 + k for k in range(3)]
        for k in range(5):
            self.issue(f"XA{k}", f"buffer_load_dword v{xa[k]}, v{vT[2]}, {srd(SX)}, s{sT[2]} offen offset:{256*k} nt")
        for k in range(3):
            self.issue(f"XO{k}", f"buffer_load_ushort v{xo[k]}, v{vT[3]}, {srd(SX)}, s{sT[3]} offen offset:{128*k} nt")
        mksrd(SQ, 22, 640*4096*2)
        mksrd(SK, 18, 0x10000000)

        seq = []
        for t in range(40):
            seq += [("Q", t), ("K", t)]
        seq += [("K", t) for t in range(40, 64)]
        for t in range(40):
            seq += [("V", t), ("O", t)]
        seq += [("V", t) for t in range(40, 64)]
        seq += [("F", t) for t in range(15)]
        N = len(seq)
        pos = {op: n for n, op in enumerate(seq)}
        ringn = [0]
        slot = {}
        kproc = [0]
        processed = set()
        ring_user = {}
        def issue_op(n):
            kind, t = seq[n]
            tag = f"{kind}{t}"
            if kind in "QV":
                s = ringn[0] % 16; ringn[0] += 1
                assert s not in ring_user or ring_user[s] in processed, (tag, ring_user.get(s))
                ring_user[s] = tag
                r = RING + 4 * s
                slot[tag] = r
            if kind == "Q":
                self.issue(tag, f"buffer_load_dwordx4 v[{r}:{r+3}], v{vQoff}, {srd(SQ)}, s{sQs} offen nt")
                a(f"s_add_u32 s{sQs}, s{sQs}, 0x8000")
            elif kind == "K":
                off = ((t & 3) >> 1) * 2048 + (t & 1) * 128
                self.issue(tag, f"buffer_load_dwordx4 a[{4*t}:{4*t+3}], v{vKoff}, {srd(SK)}, s{sKs} offen offset:{off} nt")
                if t & 3 == 3:
                    a(f"s_add_u32 s{sKs}, s{sKs}, 0x4000")
            elif kind == "V":
                self.issue(tag, f"buffer_load_dwordx4 v[{r}:{r+3}], v{vVoff}, {srd(SV)}, s{sVs} offen offset:{(t&3)*1024} nt")
                if t & 3 == 3:
                    a(f"s_add_u32 s{sVs}, s{sVs}, 0x4000")
            elif kind == "O":
                assert kproc[0] * 2 > t, ("wo overwrites unprocessed K", t, kproc[0])
                self.issue(tag, f"buffer_load_dwordx4 a[{4*t}:{4*t+3}], v{vOoff}, {srd(SO)}, s{sOs} offen offset:{(t%5)*256} nt")
                if t % 5 == 4:
                    a(f"s_add_u32 s{sOs}, s{sOs}, 5120")
            elif kind == "F":
                r = 160 + 4 * t
                if t < 10:
                    ks, mat = t >> 1, t & 1
                    self.issue(tag, f"buffer_load_dwordx4 a[{r}:{r+3}], v{vFo1}, {srd(S3 if mat else S1)}, s{sQs} offen {c.ffn_pol}")
                    if mat:
                        a(f"s_add_u32 s{sQs}, s{sQs}, {32*3456}")
                else:
                    self.issue(tag, f"buffer_load_dwordx4 a[{r}:{r+3}], v{vFo2}, {srd(S2)}, s{sKs} offen offset:{(t-10)*64} {c.ffn_pol}")
        for n in range(D):
            issue_op(n)
        self.stamp(1)
        if c.code_pf:
            a(f"s_getpc_b64 s[{sT[4]}:{sT[5]}]")
            a("L_pc:")
            a(f"s_lshr_b32 s{sT[6]}, s2, 3")
            a(f"s_lshl_b32 s{sT[6]}, s{sT[6]}, 2")
            a(f"s_add_u32 s{sT[6]}, s{sT[6]}, s{sW}")
            a(f"s_lshl_b32 s{sT[6]}, s{sT[6]}, 7")
            a(f"s_min_u32 s{sT[6]}, s{sT[6]}, L_end - L_pc")
            a(f"s_load_dword s26, s[{sT[4]}:{sT[5]}], s{sT[6]}")
            a(f"s_add_u32 s{sT[6]}, s{sT[6]}, 16384")
            a(f"s_min_u32 s{sT[6]}, s{sT[6]}, L_end - L_pc")
            a(f"s_load_dword s27, s[{sT[4]}:{sT[5]}], s{sT[6]}")
        mksrd(SV, 20, 0x10000000)
        mksrd(SO, 24, 4096*640*2)
        mksrd(SWS, 38, WS_END)
        mksrd(SDBG, 36, 256)
        mksrd(SOUT, 34, 5120)
        a(f"s_lshr_b32 s{sT[1]}, s2, 3")
        a(f"s_bfe_u32 s{sT[2]}, s2, 0x20001")
        a(f"s_mul_i32 s{sFi}, s{sT[2]}, 27")
        a(f"s_add_u32 s{sFi}, s{sFi}, s{sT[1]}")
        a(f"s_cmp_lt_u32 s{sT[1]}, 27")
        a(f"s_cselect_b32 s{sIsF}, 1, 0")
        a(f"s_bitcmp1_b32 s2, 0")
        a(f"s_cselect_b32 s{sIsF}, 0, s{sIsF}")
        mksrd(S1, 28, 0)
        mksrd(S3, 30, 0)
        mksrd(S2, 32, 0)
        a(f"s_mul_i32 s{S1+2}, s{sIsF}, {640*1728*2}")
        a(f"s_mov_b32 s{S3+2}, s{S1+2}")
        a(f"s_mov_b32 s{S2+2}, s{S1+2}")
        a(f"s_mul_i32 s{sRb}, s2, 1639")
        a(f"s_lshr_b32 s{sRb}, s{sRb}, 16")
        a(f"s_mul_i32 s{sRc}, s{sRb}, 40")
        a(f"s_sub_u32 s{sRc}, s2, s{sRc}")
        a(f"s_lshl_b32 s{sOs}, s{sH}, 2")
        a(f"s_add_u32 s{sOs}, s{sOs}, s{sW}")
        a(f"s_mul_i32 s{sOs}, s{sOs}, {32*1280}")
        a(f"v_mul_u32_u24 v{vOoff}, 1280, v{vG}")
        a(f"v_lshl_add_u32 v{vOoff}, v{vI}, 4, v{vOoff}")
        a(f"s_mov_b32 s{sMask}, 0x00010001")
        a(f"s_mov_b32 s{sMask+1}, 0x00010001")
        a(f"v_and_b32 v{vT[0]}, 1, v{vI}")
        a(f"v_lshlrev_b32 v{vT[0]}, 4, v{vT[0]}")
        a(f"v_mov_b32 v{vT[1]}, 0xffff")
        a(f"v_lshlrev_b32 v{vT[1]}, v{vT[0]}, v{vT[1]}")
        a(f"v_lshrrev_b32 v{vT[0]}, 1, v{vI}")
        for r in range(4):
            a(f"v_cmp_eq_u32 vcc, {r}, v{vT[0]}")
            a("s_nop 1")
            a(f"v_cndmask_b32 v{vM[r]}, 0, v{vT[1]}, vcc")
        for r in range(4):
            a(f"v_mov_b32 v{vClr+r}, -1")
        BAD = 0x7ffffff0
        a(f"s_lshl_b32 s{sT[1]}, s{sBH}, 1")
        a(f"s_add_u32 s{sT[1]}, s{sT[1]}, s{sSp}")
        a(f"s_mul_i32 s{sT[2]}, s{sT[1]}, 2560")
        a(f"s_add_u32 s{sT[2]}, s{sT[2]}, {Y_OFF}")
        a(f"v_lshlrev_b32 v{vT[0]}, 4, v0")
        a(f"v_add_u32 v{vC0}, s{sT[2]}, v{vT[0]}")
        a(f"v_mov_b32 v{vT[1]}, {BAD}")
        a(f"v_cmp_gt_u32 vcc, 160, v0")
        a("s_nop 1")
        a(f"v_cndmask_b32 v{vC0}, v{vT[1]}, v{vC0}, vcc")
        a(f"s_lshl_b32 s{sT[3]}, s{sT[1]}, 5")
        a(f"s_sub_u32 s{sT[3]}, s{sT[3]}, {160*16 - ML_OFF}")
        a(f"v_add_u32 v{vT[2]}, s{sT[3]}, v{vT[0]}")
        a(f"v_lshrrev_b32 v{vT[3]}, 1, v0")
        a(f"v_cmp_eq_u32 vcc, 80, v{vT[3]}")
        a("s_nop 1")
        a(f"v_cndmask_b32 v{vC1}, v{vC0}, v{vT[2]}, vcc")
        a(f"s_lshl_b32 s{sT[3]}, s2, 5")
        a(f"s_add_u32 s{sT[3]}, s{sT[3]}, {H_OFF - 162*16}")
        a(f"s_cmp_lt_u32 s2, 160")
        a(f"s_cselect_b32 s{sT[3]}, s{sT[3]}, {BAD - 4096}")
        a(f"v_add_u32 v{vT[2]}, s{sT[3]}, v{vT[0]}")
        a(f"v_cmp_eq_u32 vcc, 81, v{vT[3]}")
        a("s_nop 1")
        a(f"v_cndmask_b32 v{vC1}, v{vC1}, v{vT[2]}, vcc")
        self.issue("C0", f"buffer_store_dwordx4 v[{vClr}:{vClr+3}], v{vC1}, {srd(SWS)}, 0 offen sc1")
        a(f"s_mul_i32 s{sT[3]}, s{sFi}, 10240")
        a(f"s_add_u32 s{sT[3]}, s{sT[3]}, {F_OFF}")
        a(f"s_cmp_eq_u32 s{sIsF}, 1")
        a(f"s_cselect_b32 s{sT[3]}, s{sT[3]}, {BAD - 16384}")
        a(f"v_add_u32 v{vC2}, s{sT[3]}, v{vT[0]}")
        a(f"v_add_u32 v{vC3}, 0x1000, v{vC2}")
        self.issue("C1", f"buffer_store_dwordx4 v[{vClr}:{vClr+3}], v{vC2}, {srd(SWS)}, 0 offen sc1")
        self.issue("C2", f"buffer_store_dwordx4 v[{vClr}:{vClr+3}], v{vC3}, {srd(SWS)}, 0 offen sc1")
        a(f"v_add_u32 v{vC3}, 0x2000, v{vC2}")
        a(f"v_cmp_gt_u32 vcc, 128, v0")
        a("s_nop 1")
        a(f"v_cndmask_b32 v{vC3}, v{vT[1]}, v{vC3}, vcc")
        self.issue("C3", f"buffer_store_dwordx4 v[{vClr}:{vClr+3}], v{vC3}, {srd(SWS)}, 0 offen sc1")
        a(f"v_and_b32 v{vT[0]}, 3, v{vLane}")
        a(f"v_lshlrev_b32 v{vT[0]}, 3, v{vT[0]}")
        a(f"v_lshl_add_u32 v{vC2}, v{vG}, 1, v{vT[0]}")
        a(f"s_lshl_b32 s{sT[3]}, s2, 5")
        self.issue("XR", f"buffer_load_ushort v{vXres}, v{vC2}, {srd(SX)}, s{sT[3]} offen nt")
        a(f"v_lshrrev_b32 v{vT[0]}, 1, v{vLane}")
        a(f"v_mul_u32_u24 v{vFo1}, 3456, v{vT[0]}")
        a(f"v_and_b32 v{vT[0]}, 1, v{vLane}")
        a(f"v_lshl_add_u32 v{vFo1}, v{vT[0]}, 4, v{vFo1}")
        a(f"v_lshrrev_b32 v{vT[0]}, 2, v{vLane}")
        a(f"v_mul_u32_u24 v{vFo2}, 1280, v{vT[0]}")
        a(f"v_and_b32 v{vT[0]}, 3, v{vLane}")
        a(f"v_lshl_add_u32 v{vFo2}, v{vT[0]}, 4, v{vFo2}")

        self.wait("XO2")
        f = vT[:10]
        for k in range(5):
            a(f"v_lshlrev_b32 v{f[2*k]}, 16, v{xa[k]}")
            a(f"v_and_b32 v{f[2*k+1]}, 0xffff0000, v{xa[k]}")
        s_, t_, mean, var = vT[10], vT[11], vT[12], vT[13]
        a(f"v_add_f32 v{s_}, v{f[0]}, v{f[1]}")
        for k in range(2, 10):
            a(f"v_add_f32 v{s_}, v{s_}, v{f[k]}")
        a("s_nop 1")
        self.wred("v_add_f32", s_, t_)
        a(f"v_mul_f32 v{mean}, {INV640:#x}, v{s_}")
        for k in range(10):
            a(f"v_sub_f32 v{f[k]}, v{f[k]}, v{mean}")
        a(f"v_mul_f32 v{s_}, v{f[0]}, v{f[0]}")
        for k in range(1, 10):
            a(f"v_fmac_f32 v{s_}, v{f[k]}, v{f[k]}")
        a("s_nop 1")
        self.wred("v_add_f32", s_, t_)
        a(f"v_mul_f32 v{var}, {INV640:#x}, v{s_}")
        self.rbf(mean, mean)
        self.rbf(var, var)
        a(f"v_add_f32 v{var}, {EPS:#x}, v{var}")
        self.rbf(var, var)
        a(f"v_sqrt_f32 v{var}, v{var}")
        a("s_nop 0")
        self.rbf(var, var)
        a(f"v_rcp_f32 v{t_}, v{var}")
        for k in range(3):
            a(f"v_lshlrev_b32 v{f[k]}, 16, v{xo[k]}")
            a(f"v_sub_f32 v{f[k]}, v{f[k]}, v{mean}")
            self.rbf(f[k], f[k])
            a(f"v_mul_f32 v{f[3+k]}, v{f[k]}, v{t_}")
            a(f"v_fma_f32 v{f[6+k]}, -v{f[3+k]}, v{var}, v{f[k]}")
            a(f"v_fmac_f32 v{f[3+k]}, v{f[6+k]}, v{t_}")
            a(f"v_cvt_pk_bf16_f32 v{vX[k]}, v{f[3+k]}, v{f[3+k]}")
        a("s_nop 1")
        self.stamp(2)

        aset = [0]
        def build_A(src, lane):
            A = vA[aset[0]]; aset[0] ^= 1
            for r in range(4):
                a(f"v_and_b32_dpp v{A[r]}, v{src}, v{vM[r]} row_newbcast:{lane} row_mask:0xf bank_mask:0xf")
            return A
        def qk_tiles(T0, cnt):
            for k in range(cnt):
                T = T0 + k
                d = vD[k]
                a(f"v_mfma_f32_16x16x32_bf16 v[{d}:{d+3}], a[{8*T}:{8*T+3}], v[{vQf[0]}:{vQf[0]+3}], 0")
                a(f"v_mfma_f32_16x16x32_bf16 v[{d}:{d+3}], a[{8*T+4}:{8*T+7}], v[{vQf[1]}:{vQf[1]+3}], v[{d}:{d+3}]")
            need = 8 - 2 * (cnt - 1)
            self.nop(max(need, 1))
            for k in range(cnt):
                T = T0 + k
                d = vD[k]
                u = 2 * T
                a(f"s_lshl_b64 s[{sMt[0]}:{sMt[0]+1}], s[{sMask}:{sMask+1}], {u & 15}")
                a(f"s_lshl_b64 s[{sMt[1]}:{sMt[1]+1}], s[{sMask}:{sMask+1}], {(u & 15) + 1}")
                a(f"v_add_f32_dpp v{d}, v{d+1}, v{d} quad_perm:[1,0,3,2] row_mask:0xf bank_mask:0xf")
                a(f"v_add_f32_dpp v{d+3}, v{d+2}, v{d+3} quad_perm:[1,0,3,2] row_mask:0xf bank_mask:0xf")
                S = vS[u >> 4]
                a(f"v_cndmask_b32 v{S}, v{S}, v{d}, s[{sMt[0]}:{sMt[0]+1}]")
                a(f"v_cndmask_b32 v{S}, v{S}, v{d+3}, s[{sMt[1]}:{sMt[1]+1}]")
            kproc[0] = T0 + cnt

        qready = False
        kavail = -1
        for n in range(N):
            kind, t = seq[n]
            tag = f"{kind}{t}"
            if kind == "F":
                break
            if kind == "Q":
                A = build_A(vX[t >> 4], t & 15)
                w = self.wait(tag)
                self.nop(1 if w else 2)
                r = slot[tag]
                cin = "0" if t == 0 else f"v[{vAcc}:{vAcc+3}]"
                a(f"v_mfma_f32_16x16x32_bf16 v[{vAcc}:{vAcc+3}], v[{A[0]}:{A[3]}], v[{r}:{r+3}], {cin}")
                processed.add(tag)
            elif kind == "V":
                A = build_A(vS[t >> 4], t & 15)
                w = self.wait(tag)
                self.nop(1 if w else 2)
                r = slot[tag]
                cin = "0" if t == 0 else f"v[{vAcc}:{vAcc+3}]"
                a(f"v_mfma_f32_16x16x32_bf16 v[{vAcc}:{vAcc+3}], v[{A[0]}:{A[3]}], v[{r}:{r+3}], {cin}")
                processed.add(tag)
            else:
                self.wait(tag)
                if kind == "K":
                    kavail = t
            if n + D < N:
                issue_op(n + D)
            if tag == "Q39":
                self.stamp(3)
                a(f"v_lshrrev_b32 v{vT[0]}, 1, v{vG}")
                a(f"v_lshlrev_b32 v{vT[0]}, 9, v{vT[0]}")
                a(f"v_and_b32 v{vT[1]}, 1, v{vG}")
                a(f"v_lshl_add_u32 v{vT[0]}, v{vT[1]}, 4, v{vT[0]}")
                a(f"v_lshl_add_u32 v{vT[0]}, v{vI}, 5, v{vT[0]}")
                a(f"s_lshl_b32 s{sT[0]}, s{sW}, 10")
                a(f"v_add_u32 v{vU[0]}, s{sT[0]}, v{vT[0]}")
                a(f"v_lshlrev_b32 v{vT[1]}, 3, v{vLane}")
                a("s_nop 1")
                a(f"ds_write_b128 v{vU[0]}, v[{vAcc}:{vAcc+3}] offset:{L_Q}")
                a("s_waitcnt lgkmcnt(0)")
                a("s_barrier")
                for k in range(4):
                    a(f"ds_read_b64 v[{vT[2+2*k]}:{vT[3+2*k]}], v{vT[1]} offset:{L_Q + 1024*k}")
                a(f"s_and_b32 s{sT[1]}, s2, 3")
                a(f"s_lshl_b32 s{sT[1]}, s{sT[1]}, 6")
                a(f"s_cmp_eq_u32 s{sW}, 0")
                a(f"s_cselect_b32 s{sT[1]}, s{sT[1]}, 0x1000")
                a(f"v_mov_b32 v{vT[10]}, 1")
                a(f"v_mov_b32 v{vT[11]}, 0")
                a("s_mov_b64 exec, 1")
                self.issue("AT", f"buffer_atomic_add v{vT[10]}, v{vT[11]}, {srd(SDBG)}, s{sT[1]} offen sc1")
                a("s_mov_b64 exec, -1")
                a(f"s_lshl_b32 s{sT[0]}, s{sW}, 8")
                a(f"v_lshl_add_u32 v{vT[12]}, v{vLane}, 2, s{sT[0]}")
                a(f"v_and_b32 v{vT[13]}, 1, v{vI}")
                a(f"v_lshlrev_b32 v{vT[13]}, 4, v{vT[13]}")
                a(f"v_lshl_add_u32 v{vT[13]}, v{vG}, 5, v{vT[13]}")
                a(f"v_add_u32 v{vT[13]}, s{sT[0]}, v{vT[13]}")
                a("s_waitcnt lgkmcnt(0)")
                a(f"v_add_f32 v{vT[2]}, v{vT[2]}, v{vT[4]}")
                a(f"v_add_f32 v{vT[3]}, v{vT[3]}, v{vT[5]}")
                a(f"v_add_f32 v{vT[6]}, v{vT[6]}, v{vT[8]}")
                a(f"v_add_f32 v{vT[7]}, v{vT[7]}, v{vT[9]}")
                a(f"v_add_f32 v{vT[2]}, v{vT[2]}, v{vT[6]}")
                a(f"v_add_f32 v{vT[3]}, v{vT[3]}, v{vT[7]}")
                a(f"v_cvt_pk_bf16_f32 v{vT[2]}, v{vT[2]}, v{vT[3]}")
                a(f"ds_write_b32 v{vT[12]}, v{vT[2]} offset:{L_QB}")
                a("s_waitcnt lgkmcnt(0)")
                a(f"ds_read_b128 v[{vQf[0]}:{vQf[0]+3}], v{vT[13]} offset:{L_QB}")
                a(f"ds_read_b128 v[{vQf[1]}:{vQf[1]+3}], v{vT[13]} offset:{L_QB + 128}")
                a(f"s_mul_i32 s{sQs}, s{sW}, {160*3456}")
                a(f"s_lshl_b32 s{sT[0]}, s{sFi}, 5")
                a(f"s_add_u32 s{sQs}, s{sQs}, s{sT[0]}")
                a("s_waitcnt lgkmcnt(0)")
                qready = True
                self.stamp(4)
            if qready and kproc[0] < 32:
                can = (kavail + 1) // 2 - kproc[0]
                if tag == "K63":
                    while kproc[0] < 32:
                        qk_tiles(kproc[0], min(4, 32 - kproc[0]))
                elif can > 0:
                    qk_tiles(kproc[0], min(c.kcatch, can))
            if tag == "K63":
                self.stamp(5)
                a(f"s_mul_i32 s{sKs}, s{sFi}, {16*1280}")
                a(f"s_mul_i32 s{sT[0]}, s{sW}, 320")
                a(f"s_add_u32 s{sKs}, s{sKs}, s{sT[0]}")
                for k in range(4):
                    self.rbf(vS[k], vS[k])
                    a(f"v_mul_f32 v{vS[k]}, {SCALE:#x}, v{vS[k]}")
                    self.rbf(vS[k], vS[k])
                a(f"v_max3_f32 v{vMs}, v{vS[0]}, v{vS[1]}, v{vS[2]}")
                a(f"v_max_f32 v{vMs}, v{vMs}, v{vS[3]}")
                a("s_nop 1")
                self.wred("v_max_f32", vMs, vT[0])
                for k in range(4):
                    a(f"v_sub_f32 v{vS[k]}, v{vS[k]}, v{vMs}")
                    a(f"v_mul_f32 v{vS[k]}, {LOG2E:#x}, v{vS[k]}")
                    a(f"v_exp_f32 v{vS[k]}, v{vS[k]}")
                a("s_nop 0")
                a(f"v_add_f32 v{vLs}, v{vS[0]}, v{vS[1]}")
                a(f"v_add_f32 v{vT[1]}, v{vS[2]}, v{vS[3]}")
                a(f"v_add_f32 v{vLs}, v{vLs}, v{vT[1]}")
                for k in range(4):
                    a(f"v_cvt_pk_bf16_f32 v{vS[k]}, v{vS[k]}, v{vS[k]}")
                self.wred("v_add_f32", vLs, vT[0])
                a(f"s_lshl_b32 s{sT[0]}, s{sBH}, 6")
                a(f"s_lshl_b32 s{sT[1]}, s{sSp}, 5")
                a(f"s_add_u32 s{sT[1]}, s{sT[1]}, s{sT[0]}")
                a(f"s_lshl_b32 s{sT[2]}, s{sW}, 3")
                a(f"s_add_u32 s{sT[1]}, s{sT[1]}, s{sT[2]}")
                a(f"v_mov_b32 v{vT[11]}, {ML_OFF}")
                a("s_mov_b64 exec, 1")
                self.issue("MLS", f"buffer_store_dwordx2 v[{vMs}:{vLs}], v{vT[11]}, {srd(SWS)}, s{sT[1]} offen sc1")
                a("s_mov_b64 exec, -1")
                self.stamp(6)
            if tag == "V16":
                a(f"v_and_b32 v{vT[11]}, 3, v{vLane}")
                a(f"v_lshlrev_b32 v{vU[1]}, 6, v{vT[11]}")
                self.issue("CNT", f"buffer_load_dword v{vCnt}, v{vU[1]}, {srd(SDBG)}, 0 offen sc1")
            if tag == "V34":
                self.wait("CNT")
                ok = self.label("cntok"); lp = self.label("cntlp")
                a(f"s_mov_b32 s{sT[0]}, {SPIN_MAX}")
                a(f"{lp}:")
                a(f"v_cmp_ne_u32 vcc, 64, v{vCnt}")
                a(f"s_cbranch_vccz {ok}")
                a(f"s_sub_u32 s{sT[0]}, s{sT[0]}, 1")
                a(f"s_cbranch_scc1 {ok}")
                a("s_sleep 4")
                a(f"buffer_load_dword v{vCnt}, v{vU[1]}, {srd(SDBG)}, 0 offen sc1")
                a("s_waitcnt vmcnt(0)")
                a(f"s_branch {lp}")
                a(f"{ok}:")
                a(f"v_and_b32 v{vT[11]}, 7, v{vLane}")
                a(f"v_lshlrev_b32 v{vU[1]}, 3, v{vT[11]}")
                a(f"s_lshl_b32 s{sT[7]}, s{sBH}, 6")
                self.issue("MLL", f"buffer_load_dwordx2 v[{vML}:{vML+1}], v{vU[1]}, {srd(SWS)}, s{sT[7]} offen offset:{ML_OFF} sc1")
            if tag == "V56":
                self.wait("MLL")
                ok = self.label("mlok"); lp = self.label("mllp")
                a(f"s_mov_b32 s{sT[0]}, {SPIN_MAX}")
                a(f"{lp}:")
                a(f"v_max_u32 v{vT[0]}, v{vML}, v{vML+1}")
                a(f"v_cmp_eq_u32 vcc, -1, v{vT[0]}")
                a(f"s_cbranch_vccz {ok}")
                a(f"s_sub_u32 s{sT[0]}, s{sT[0]}, 1")
                a(f"s_cbranch_scc1 {ok}")
                a("s_sleep 4")
                a(f"buffer_load_dwordx2 v[{vML}:{vML+1}], v{vU[1]}, {srd(SWS)}, s{sT[7]} offen offset:{ML_OFF} sc1")
                a("s_waitcnt vmcnt(0)")
                a(f"s_branch {lp}")
                a(f"{ok}:")
                mm, e, L = vT[0], vT[1], vT[2]
                a(f"v_max_f32_dpp v{mm}, v{vML}, v{vML} quad_perm:[1,0,3,2] row_mask:0xf bank_mask:0xf")
                a("s_nop 1")
                a(f"v_max_f32_dpp v{mm}, v{mm}, v{mm} quad_perm:[2,3,0,1] row_mask:0xf bank_mask:0xf")
                a("s_nop 1")
                a(f"v_max_f32_dpp v{mm}, v{mm}, v{mm} row_half_mirror row_mask:0xf bank_mask:0xf")
                a(f"v_sub_f32 v{e}, v{vML}, v{mm}")
                a(f"v_mul_f32 v{e}, {LOG2E:#x}, v{e}")
                a(f"v_exp_f32 v{e}, v{e}")
                a("s_nop 0")
                a(f"v_mul_f32 v{L}, v{e}, v{vML+1}")
                a("s_nop 1")
                a(f"v_add_f32_dpp v{L}, v{L}, v{L} quad_perm:[1,0,3,2] row_mask:0xf bank_mask:0xf")
                a("s_nop 1")
                a(f"v_add_f32_dpp v{L}, v{L}, v{L} quad_perm:[2,3,0,1] row_mask:0xf bank_mask:0xf")
                a("s_nop 1")
                a(f"v_add_f32_dpp v{L}, v{L}, v{L} row_half_mirror row_mask:0xf bank_mask:0xf")
                a(f"v_rcp_f32 v{L}, v{L}")
                a(f"s_lshl_b32 s{sT[4]}, s{sSp}, 2")
                a(f"v_mul_f32 v{e}, v{e}, v{L}")
                a(f"s_add_u32 s{sT[5]}, s{sT[4]}, 1")
                a(f"s_add_u32 s{sT[6]}, s{sT[4]}, 2")
                a(f"s_add_u32 s{sT[7]}, s{sT[4]}, 3")
                for k in range(4):
                    a(f"v_readlane_b32 s{sF[k]}, v{e}, s{sT[4+k]}")
                a(f"v_and_b32 v{vT[3]}, 7, v{vI}")
                a(f"v_lshlrev_b32 v{vT[3]}, 4, v{vT[3]}")
                a(f"v_lshl_add_u32 v{vT[3]}, v{vG}, 2, v{vT[3]}")
                a(f"s_lshl_b32 s{sT[4]}, s{sW}, 7")
                a(f"v_add_u32 v{vU[2]}, s{sT[4]}, v{vT[3]}")
                a(f"v_lshlrev_b32 v{vT[3]}, 5, v{vI}")
                a(f"v_lshl_add_u32 v{vT[3]}, v{vG}, 4, v{vT[3]}")
                a(f"s_mul_i32 s{sT[4]}, s{sW}, 2560")
                a(f"v_add_u32 v{vU[3]}, s{sT[4]}, v{vT[3]}")
                a(f"v_lshlrev_b32 v{vU[4]}, 4, v0")
                a(f"v_lshrrev_b32 v{vT[3]}, 2, v{vLane}")
                a(f"v_and_b32 v{vT[4]}, 3, v{vLane}")
                a(f"v_lshlrev_b32 v{vT[4]}, 4, v{vT[4]}")
                a(f"v_mul_u32_u24 v{vU[5]}, 2560, v{vT[3]}")
                a(f"v_add_u32 v{vU[5]}, v{vU[5]}, v{vT[4]}")
                a(f"v_mul_u32_u24 v{vU[6]}, 10240, v{vT[3]}")
                a(f"v_add_u32 v{vU[6]}, v{vU[6]}, v{vT[4]}")
                a(f"v_lshlrev_b32 v{vXres}, 16, v{vXres}")

        self.stamp(7)
        self.nop(8)
        a(f"ds_write_b128 v{vU[0]}, v[{vAcc}:{vAcc+3}] offset:{L_O}")
        a("s_waitcnt lgkmcnt(0)")
        a("s_barrier")
        for k in range(4):
            a(f"ds_read_b32 v{vT[k]}, v{vU[2]} offset:{L_O + 1024*k}")
        self.wait("O39")
        a("s_waitcnt lgkmcnt(3)")
        a(f"v_mul_f32 v{vT[0]}, s{sF[0]}, v{vT[0]}")
        a("s_waitcnt lgkmcnt(2)")
        a(f"v_fmac_f32 v{vT[0]}, s{sF[1]}, v{vT[1]}")
        a("s_waitcnt lgkmcnt(1)")
        a(f"v_fmac_f32 v{vT[0]}, s{sF[2]}, v{vT[2]}")
        a("s_waitcnt lgkmcnt(0)")
        a(f"v_fmac_f32 v{vT[0]}, s{sF[3]}, v{vT[3]}")
        a(f"v_cvt_pk_bf16_f32 v{vT[0]}, v{vT[0]}, v{vT[0]}")
        a("s_nop 1")
        A = build_A(vT[0], 0)
        for kg in range(8):
            An = None
            if kg == 0:
                self.nop(2)
            for cb in range(5):
                r = 4 * (kg * 5 + cb)
                y = vY[cb]
                cin = "0" if kg == 0 else f"v[{y}:{y+3}]"
                a(f"v_mfma_f32_16x16x32_bf16 v[{y}:{y+3}], v[{A[0]}:{A[3]}], a[{r}:{r+3}], {cin}")
                if cb == 0 and kg < 7:
                    An = build_A(vT[0], kg + 1)
            A = An
        a("s_mov_b32 exec_hi, 0")
        self.nop(3)
        for cb in range(5):
            y = vY[cb]
            a(f"ds_write_b128 v{vU[3]}, v[{y}:{y+3}] offset:{L_Y + 512*cb}")
            if cb < 4:
                a("s_nop 0")
        a("s_mov_b64 exec, -1")
        a("s_waitcnt lgkmcnt(0)")
        a("s_barrier")
        a(f"s_cmp_eq_u32 s{sW}, 3")
        a("s_cbranch_scc1 L_red1")
        for k in range(4):
            a(f"ds_read_b128 v[{vP+4*k}:{vP+4*k+3}], v{vU[4]} offset:{L_Y + 2560*k}")
        a("s_waitcnt lgkmcnt(2)")
        a(f"v_pk_add_f32 v[{vP}:{vP+1}], v[{vP}:{vP+1}], v[{vP+4}:{vP+5}]")
        a(f"v_pk_add_f32 v[{vP+2}:{vP+3}], v[{vP+2}:{vP+3}], v[{vP+6}:{vP+7}]")
        a("s_waitcnt lgkmcnt(0)")
        a(f"v_pk_add_f32 v[{vP+8}:{vP+9}], v[{vP+8}:{vP+9}], v[{vP+12}:{vP+13}]")
        a(f"v_pk_add_f32 v[{vP+10}:{vP+11}], v[{vP+10}:{vP+11}], v[{vP+14}:{vP+15}]")
        a(f"v_pk_add_f32 v[{vP}:{vP+1}], v[{vP}:{vP+1}], v[{vP+8}:{vP+9}]")
        a(f"v_pk_add_f32 v[{vP+2}:{vP+3}], v[{vP+2}:{vP+3}], v[{vP+10}:{vP+11}]")
        a(f"buffer_store_dwordx4 v[{vP}:{vP+3}], v{vC0}, {srd(SWS)}, 0 offen sc1")
        self.stamp(8)
        a("s_branch L_ffn")

        def reduce_poll(name, nload, voff, sbase, stride):
            lp = f"L_{name}_lp"; ok = f"L_{name}_ok"
            a(f"s_mov_b32 s{sT[4]}, {SPIN_MAX}")
            a(f"{lp}:")
            a(f"s_mov_b32 s{sT[5]}, s{sbase}")
            for k in range(nload):
                a(f"buffer_load_dwordx4 v[{vP+4*k}:{vP+4*k+3}], v{voff}, {srd(SWS)}, s{sT[5]} offen sc1")
                if k < nload - 1:
                    a(f"s_add_u32 s{sT[5]}, s{sT[5]}, {16*stride}")
            acc = vT[0]
            for k in range(1, nload):
                a(f"s_waitcnt vmcnt({nload-1-k})")
                s0 = vP if k == 1 else acc
                a(f"v_pk_add_f32 v[{acc}:{acc+1}], v[{s0}:{s0+1}], v[{vP+4*k}:{vP+4*k+1}]")
                a(f"v_pk_add_f32 v[{acc+2}:{acc+3}], v[{s0+2}:{s0+3}], v[{vP+4*k+2}:{vP+4*k+3}]")
            a(f"v_pk_add_f32 v[{acc+4}:{acc+5}], v[{acc}:{acc+1}], v[{acc+2}:{acc+3}]")
            a(f"v_cmp_u_f32 vcc, v{acc+4}, v{acc+5}")
            a(f"s_cbranch_vccz {ok}")
            a(f"v_max3_u32 v{acc+4}, v{vP}, v{vP+1}, v{vP+2}")
            regs = [vP + k for k in range(3, 4 * nload)]
            while regs:
                if len(regs) >= 2:
                    a(f"v_max3_u32 v{acc+4}, v{acc+4}, v{regs[0]}, v{regs[1]}"); regs = regs[2:]
                else:
                    a(f"v_max_u32 v{acc+4}, v{acc+4}, v{regs[0]}"); regs = regs[1:]
            a(f"v_cmp_eq_u32 vcc, -1, v{acc+4}")
            a(f"s_cbranch_vccz {ok}")
            a(f"s_sub_u32 s{sT[4]}, s{sT[4]}, 1")
            a(f"s_cbranch_scc1 {ok}")
            a("s_mov_b64 exec, vcc")
            a("s_sleep 1")
            a(f"s_branch {lp}")
            a(f"{ok}:")
            a("s_mov_b64 exec, -1")
            a("s_nop 0")
            a(f"v_permlane32_swap_b32 v{acc}, v{acc+2}")
            a(f"v_permlane32_swap_b32 v{acc+1}, v{acc+3}")
            a("s_nop 0")
            a(f"v_add_f32 v{acc}, v{acc}, v{acc+2}")
            a(f"v_add_f32 v{acc+1}, v{acc+1}, v{acc+3}")
            a("s_nop 1")
            a(f"v_permlane16_swap_b32 v{acc}, v{acc+1}")
            a("s_nop 0")
            a(f"v_add_f32 v{acc}, v{acc}, v{acc+1}")
            a("s_nop 1")
            a(f"v_add_f32_dpp v{acc}, v{acc}, v{acc} row_ror:4 row_mask:0xf bank_mask:0xf")
            a("s_nop 1")
            a(f"v_add_f32_dpp v{acc}, v{acc}, v{acc} row_ror:8 row_mask:0xf bank_mask:0xf")
            return acc
        def finish_resid(acc, sr, soff_reg, pol):
            self.rbf(acc, acc)
            a(f"v_add_f32 v{acc}, v{acc}, v{vXres}")
            self.rbf(vXres, acc)
            a(f"v_mov_b32 v{acc}, v{vXres}")
            a(f"v_mov_b32 v{acc+1}, v{vXres}")
            a("s_nop 1")
            a(f"v_permlane16_swap_b32 v{acc}, v{acc+1}")
            a("s_mov_b32 exec_lo, 15")
            a("s_mov_b32 exec_hi, 15")
            a(f"v_cvt_pk_bf16_f32 v{acc}, v{acc}, v{acc+1}")
            a(f"buffer_store_dword v{acc}, v{vC2}, {srd(sr)}, s{soff_reg} offen {pol}")
            a("s_mov_b64 exec, -1")

        a("L_red1:")
        a("s_cmp_ge_u32 s2, 160")
        a("s_cbranch_scc1 L_ffn")
        a(f"s_mul_i32 s{sT[6]}, s{sRb}, {64*2560}")
        a(f"s_lshl_b32 s{sT[7]}, s{sRc}, 6")
        a(f"s_add_u32 s{sT[6]}, s{sT[6]}, s{sT[7]}")
        a(f"s_add_u32 s{sT[6]}, s{sT[6]}, {Y_OFF}")
        acc = reduce_poll("r1", 4, vU[5], sT[6], 2560)
        a(f"s_lshl_b32 s{sT[7]}, s2, 5")
        a(f"s_add_u32 s{sT[7]}, s{sT[7]}, {H_OFF}")
        finish_resid(acc, SWS, sT[7], "sc1")
        self.stamp(9)

        a("L_ffn:")
        a(f"s_cmp_eq_u32 s{sIsF}, 0")
        a("s_cbranch_scc1 L_red2")
        a(f"s_mul_i32 s{sT[4]}, s{sW}, 15360")
        a(f"v_add_u32 v{vT[8]}, s{sT[4]}, v{vVoff}")
        a("s_waitcnt vmcnt(0)")
        for t in range(15):
            r = 160 + 4 * t
            a(f"ds_write_b128 v{vT[8]}, a[{r}:{r+3}] offset:{L_W + 1024*t}")
        a(f"v_lshrrev_b32 v{vT[9]}, 2, v{vI}")
        a(f"v_and_b32 v{vT[10]}, 3, v{vI}")
        a(f"v_lshlrev_b32 v{vT[10]}, 3, v{vT[10]}")
        a(f"v_lshl_add_u32 v{vT[11]}, v{vG}, 3, v{vT[9]}")
        a(f"v_lshl_add_u32 v{vT[11]}, v{vT[11]}, 5, v{vT[10]}")
        a(f"v_add_u32 v{vT[11]}, s{sT[4]}, v{vT[11]}")
        a(f"v_lshl_add_u32 v{vT[12]}, v{vG}, 2, v{vT[9]}")
        a(f"v_lshl_add_u32 v{vT[12]}, v{vT[12]}, 6, v{vT[10]}")
        a(f"v_add_u32 v{vT[12]}, s{sT[4]}, v{vT[12]}")
        a("s_waitcnt lgkmcnt(0)")
        WB = RING
        for t in range(10):
            for hh in range(2):
                r = WB + 4 * t + 2 * hh
                a(f"ds_read_b64_tr_b16 v[{r}:{r+1}], v{vT[11]} offset:{L_W + 1024*t + 128*hh}")
                if (2 * t + hh) % 8 == 7:
                    a("s_waitcnt lgkmcnt(0)")
        for T in range(10):
            r = WB + 40 + 2 * T
            a(f"ds_read_b64_tr_b16 v[{r}:{r+1}], v{vT[12]} offset:{L_W + 10240 + 1024*(T>>1) + 32*(T&1)}")
        a(f"v_mov_b32 v{vT[13]}, 0x3f803f80")
        a(f"v_cmp_eq_u32 vcc, 4, v{vI}")
        a("s_nop 1")
        for k in range(20):
            a(f"v_cndmask_b32 v{vP+k}, 0, v{vT[13]}, vcc")
        a(f"v_mul_u32_u24 v{vT[14]}, 1280, v{vI}")
        a(f"v_lshl_add_u32 v{vT[14]}, v{vG}, 4, v{vT[14]}")
        a(f"s_mul_i32 s{sT[6]}, s{sW}, 320")
        a(f"s_add_u32 s{sT[6]}, s{sT[6]}, {H_OFF}")
        a(f"v_lshlrev_b32 v{vT[15]}, 4, v{vI}")
        a(f"v_lshl_add_u32 v{vT[15]}, v{vG}, 11, v{vT[15]}")
        a(f"s_lshl_b32 s{sT[7]}, s{sW}, 2")
        a(f"v_add_u32 v{vT[15]}, s{sT[7]}, v{vT[15]}")
        a(f"v_and_b32 v{vT[16]}, 3, v{vI}")
        a(f"v_lshl_add_u32 v{vT[16]}, v{vG}, 2, v{vT[16]}")
        a(f"v_lshlrev_b32 v{vT[16]}, 4, v{vT[16]}")
        a(f"v_lshl_add_u32 v{vT[17]}, v{vT[9]}, 8, v{vT[16]}")
        a(f"v_lshlrev_b32 v{vT[18]}, 8, v{vT[9]}")
        a(f"v_lshl_add_u32 v{vT[19]}, v{vT[9]}, 4, v{vT[18]}")
        a(f"v_mul_u32_u24 v{vT[20]}, 2560, v{vT[9]}")
        a(f"v_lshl_add_u32 v{vT[20]}, v{vG}, 4, v{vT[20]}")
        a(f"v_and_b32 v{vT[21]}, 1, v{vI}")
        a(f"v_lshlrev_b32 v{vT[21]}, 4, v{vT[21]}")
        a(f"v_mov_b32 v{vT[13]}, 0xffff")
        a(f"v_lshlrev_b32 v{vT[21]}, v{vT[21]}, v{vT[13]}")
        a(f"s_mul_i32 s{sT[7]}, s{sFi}, 10240")
        a(f"s_mul_i32 s{sT[5]}, s{sW}, 640")
        a(f"s_add_u32 s{sT[7]}, s{sT[7]}, s{sT[5]}")
        a(f"s_add_u32 s{sT[7]}, s{sT[7]}, {F_OFF}")
        a("s_waitcnt lgkmcnt(0)")
        self.stamp(10)
        a(f"s_mov_b32 s{sT[4]}, {SPIN_MAX}")
        a("s_mov_b32 exec_lo, 0x000f000f")
        a("s_mov_b32 exec_hi, 0x000f000f")
        a("L_h_lp:")
        for k in range(5):
            a(f"buffer_load_dwordx4 v[{vP+4*k}:{vP+4*k+3}], v{vT[14]}, {srd(SWS)}, s{sT[6]} offen offset:{64*k} sc1")
        for k in range(5):
            a(f"s_waitcnt vmcnt({4-k})")
            if k == 0:
                a(f"v_max3_u32 v{vT[0]}, v{vP}, v{vP+1}, v{vP+2}")
                a(f"v_max_u32 v{vT[0]}, v{vT[0]}, v{vP+3}")
            else:
                a(f"v_max3_u32 v{vT[0]}, v{vT[0]}, v{vP+4*k}, v{vP+4*k+1}")
                a(f"v_max3_u32 v{vT[0]}, v{vT[0]}, v{vP+4*k+2}, v{vP+4*k+3}")
        a(f"v_cmp_eq_u32 vcc, -1, v{vT[0]}")
        a("s_cbranch_vccz L_h_ok")
        a(f"s_sub_u32 s{sT[4]}, s{sT[4]}, 1")
        a("s_cbranch_scc1 L_h_ok")
        a("s_mov_b64 exec, vcc")
        a("s_sleep 1")
        a("s_branch L_h_lp")
        a("L_h_ok:")
        a("s_mov_b64 exec, -1")
        self.stamp(11)
        dG, dU, dS = vD[0], vD[1], vD[2]
        for ks in range(5):
            A = vP + 4 * ks
            for d, B in ((dS, A), (dG, WB + 8 * ks), (dU, WB + 8 * ks + 4)):
                cin = "0" if ks == 0 else f"v[{d}:{d+3}]"
                a(f"v_mfma_f32_16x16x32_bf16 v[{d}:{d+3}], v[{A}:{A+3}], v[{B}:{B+3}], {cin}")
        a("s_mov_b32 exec_hi, 0")
        self.nop(5)
        a("s_mov_b64 exec, 0xffff")
        for r in range(4):
            a(f"ds_write_b32 v{vT[15]}, v{dS+r} offset:{L_G + 4096 + 256*r}")
        a("s_mov_b32 exec_lo, -1")
        for r in range(4):
            a(f"ds_write_b32 v{vT[15]}, v{dG+r} offset:{L_G + 256*r}")
        for r in range(4):
            a(f"ds_write_b32 v{vT[15]}, v{dU+r} offset:{L_G + 1024 + 256*r}")
        a("s_mov_b64 exec, -1")
        a("s_waitcnt lgkmcnt(0)")
        a("s_barrier")
        R = vP + 24
        a(f"ds_read_b128 v[{R}:{R+3}], v{vT[18]} offset:{L_G + 4096 + 64}")
        a(f"ds_read_b128 v[{R+4}:{R+7}], v{vT[19]} offset:{L_G + 4096}")
        a(f"ds_read_b128 v[{R+8}:{R+11}], v{vT[16]} offset:{L_G + 2048}")
        a(f"ds_read_b128 v[{R+12}:{R+15}], v{vT[16]} offset:{L_G + 3072}")
        a(f"ds_read_b128 v[{R+16}:{R+19}], v{vT[17]} offset:{L_G}")
        a(f"ds_read_b128 v[{R+20}:{R+23}], v{vT[17]} offset:{L_G + 1024}")
        def sum4(r):
            a(f"v_pk_add_f32 v[{r}:{r+1}], v[{r}:{r+1}], v[{r+2}:{r+3}]")
            a(f"v_add_f32 v{r}, v{r}, v{r+1}")
        a("s_waitcnt lgkmcnt(4)")
        sum4(R); sum4(R + 4)
        mean, var = R, R + 4
        a(f"v_mul_f32 v{mean}, {INV640:#x}, v{mean}")
        a(f"v_mul_f32 v{var}, {INV640:#x}, v{var}")
        a(f"v_fma_f32 v{var}, -v{mean}, v{mean}, v{var}")
        a(f"v_max_f32 v{var}, 0, v{var}")
        self.rbf(var, var)
        a(f"v_add_f32 v{var}, {EPS:#x}, v{var}")
        self.rbf(var, var)
        a(f"v_sqrt_f32 v{var}, v{var}")
        self.rbf(mean, mean)
        self.rbf(var, var)
        a(f"v_rcp_f32 v{var}, v{var}")
        a("s_waitcnt lgkmcnt(0)")
        sum4(R + 8); sum4(R + 12); sum4(R + 16); sum4(R + 20)
        g, u = R + 16, R + 20
        a(f"v_fma_f32 v{g}, -v{mean}, v{R+8}, v{g}")
        a(f"v_fma_f32 v{u}, -v{mean}, v{R+12}, v{u}")
        a(f"v_mul_f32 v{g}, v{g}, v{var}")
        a(f"v_mul_f32 v{u}, v{u}, v{var}")
        self.rbf(g, g)
        a(f"v_mul_f32 v{R+1}, {LOG2E ^ 0x80000000:#x}, v{g}")
        a(f"v_exp_f32 v{R+1}, v{R+1}")
        self.rbf(u, u)
        a(f"v_add_f32 v{R+1}, 1.0, v{R+1}")
        a(f"v_rcp_f32 v{R+1}, v{R+1}")
        a("s_nop 0")
        a(f"v_mul_f32 v{g}, v{g}, v{R+1}")
        self.rbf(g, g)
        a(f"v_mul_f32 v{g}, v{g}, v{u}")
        a(f"v_cvt_pk_bf16_f32 v{g}, v{g}, v{g}")
        a(f"v_and_b32 v{g}, v{g}, v{vT[21]}")
        a("s_nop 1")
        a(f"v_or_b32_dpp v{g}, v{g}, v{g} quad_perm:[1,0,3,2] row_mask:0xf bank_mask:0xf")
        a("s_nop 1")
        a(f"v_mov_b32_dpp v{R}, v{g} quad_perm:[0,0,0,0] row_mask:0xf bank_mask:0xf")
        a(f"v_mov_b32_dpp v{R+1}, v{g} quad_perm:[2,2,2,2] row_mask:0xf bank_mask:0xf")
        a("s_nop 1")
        OUT = 128
        for T in range(10):
            r = WB + 40 + 2 * T
            d = OUT + 4 * T
            a(f"v_mfma_f32_16x16x16_bf16 v[{d}:{d+3}], v[{r}:{r+1}], v[{R}:{R+1}], 0")
        a("s_mov_b32 exec_lo, 0x11111111")
        a("s_mov_b32 exec_hi, 0x11111111")
        for T in range(10):
            d = OUT + 4 * T
            if T in (3, 5, 7, 9):
                a("s_nop 0")
            a(f"buffer_store_dwordx4 v[{d}:{d+3}], v{vT[20]}, {srd(SWS)}, s{sT[7]} offen offset:{64*T} sc1")
        a("s_mov_b64 exec, -1")
        self.stamp(12)

        a("L_red2:")
        a(f"s_cmp_lg_u32 s{sW}, 3")
        a("s_cbranch_scc1 L_fin")
        a("s_cmp_ge_u32 s2, 160")
        a("s_cbranch_scc1 L_fin")
        a(f"s_mul_i32 s{sT[6]}, s{sRb}, 2560")
        a(f"s_lshl_b32 s{sT[7]}, s{sRc}, 6")
        a(f"s_add_u32 s{sT[6]}, s{sT[6]}, s{sT[7]}")
        a(f"s_add_u32 s{sT[6]}, s{sT[6]}, {F_OFF}")
        a("s_waitcnt vmcnt(0)")
        acc = reduce_poll("r2", 7, vU[6], sT[6], 10240)
        a(f"s_lshl_b32 s{sT[7]}, s2, 5")
        finish_resid(acc, SOUT, sT[7], "")
        self.stamp(13)
        a("L_fin:")
        if c.diag:
            a("s_getreg_b32 s84, hwreg(HW_REG_XCC_ID)")
            a("s_nop 0")
            a("v_writelane_b32 v63, s84, 15")
            a(f"s_mov_b32 s{SWS+2}, 0x10000000")
            a(f"s_lshl_b32 s{sT[0]}, s2, 2")
            a(f"s_add_u32 s{sT[0]}, s{sT[0]}, s{sW}")
            a(f"s_lshl_b32 s{sT[0]}, s{sT[0]}, 8")
            a(f"s_add_u32 s{sT[0]}, s{sT[0]}, {DIAG_OFF}")
            a(f"v_lshlrev_b32 v{vT[0]}, 2, v{vLane}")
            a(f"buffer_store_dword v63, v{vT[0]}, {srd(SWS)}, s{sT[0]} offen")
        a("L_end:")
        a("s_endpgm")

    def text(self):
        c = self.c
        hdr = open('cdna_kernels/' + NAME + '.s.ref').read().split('\n')
        head = [l for l in hdr if l.startswith(';') and '@launch' not in l and not l.startswith('; Override') and not l.startswith('; grid=')]
        out = head + [f"; @launch grid=(256,1,1) block=(256,1,1) lds={LDS_BYTES}",
               '.amdgcn_target "amdgcn-amd-amdhsa--gfx950"', '.text', f'.globl {c.name}', '.p2align 8',
               f'.type {c.name},@function']
        body = []
        for s in self.o:
            for l in s.split('\n'):
                body.append(l if l.endswith(':') else '    ' + l)
        out += body
        out += ['.section .rodata,"a"', '.p2align 6', f'.amdhsa_kernel {c.name}',
                '  .amdhsa_next_free_vgpr 512', '  .amdhsa_next_free_sgpr 102', '  .amdhsa_accum_offset 256',
                '  .amdhsa_group_segment_fixed_size 0', '  .amdhsa_kernarg_size 96', '  .amdhsa_user_sgpr_count 2',
                '  .amdhsa_user_sgpr_kernarg_segment_ptr 1', '  .amdhsa_system_sgpr_workgroup_id_x 1',
                '  .amdhsa_float_denorm_mode_32 3',
                '.end_amdhsa_kernel', '']
        return '\n'.join(out)

if __name__ == "__main__":
    cfg = Cfg()
    outp = 'cdna_kernels/' + NAME + '.s'
    for arg in sys.argv[1:]:
        k, v = arg.split('=', 1)
        if k == 'out':
            outp = v
        else:
            cur = getattr(cfg, k)
            setattr(cfg, k, type(cur)(int(v)) if isinstance(cur, (bool, int)) else v)
    g = Gen(cfg)
    g.build()
    open(outp, 'w').write(g.text())
    print("wrote", outp, "lds", LDS_BYTES)
```
